```python
import torch

def _softmax(x, axis=-1):
    return torch.softmax(x, dim=axis)

def _gelu(x):
    return torch.nn.functional.gelu(x, approximate='tanh')

def _silu(x):
    return torch.nn.functional.silu(x)

def _sigmoid(x):
    return torch.sigmoid(x)

def _layernorm(x, axis=-1, eps=1e-05):
    m = x.mean(dim=axis, keepdim=True)
    v = x.var(dim=axis, keepdim=True, unbiased=False)
    return (x - m) / torch.sqrt(v + eps)

def _scatter_add(tgt, idx, src, axis=0):
    return tgt.clone().index_add_(axis, idx, src)

def _segment_sum(src, seg, n):
    out = torch.zeros((n,) + src.shape[1:], dtype=src.dtype)
    return out.index_add_(0, seg, src)

def _pad(x, pw):
    flat = tuple((v for pair in reversed(pw) for v in pair))
    return torch.nn.functional.pad(x, flat)
kernel_name = 'standalone__tree_speculative_verify_tree_attention_over_candidate_token_tree__sampling'

def setup_inputs():

    _w = lambda a: (lambda t: t.to(torch.bfloat16) if t.is_floating_point() else t)(torch.as_tensor(a))
    B, Hq, Hkv, T, C, D = (8, 32, 16, 4, 8192, 128)
    tree_mask = torch.zeros((B, T, T), dtype=float)
    for b in range(B):
        parent = torch.zeros(T, dtype=torch.int64)
        for i in range(1, T):
            parent[i] = int(torch.randint(0, i, (1,)).item())
        for i in range(T):
            j = i
            tree_mask[b, i, j] = 1.0
            while j > 0:
                j = parent[j]
                tree_mask[b, i, j] = 1.0
    return {'q': _w((lambda *s: torch.randn(*s, dtype=torch.bfloat16) * 0.8)(B, Hq, T, D)), 'k_cache': _w((lambda *s: torch.randn(*s, dtype=torch.bfloat16) * 0.8)(B, Hkv, C, D)), 'v_cache': _w((lambda *s: torch.randn(*s, dtype=torch.bfloat16) * 0.05)(B, Hkv, C, D)), 'k_tree': _w((lambda *s: torch.randn(*s, dtype=torch.bfloat16) * 0.8)(B, Hkv, T, D)), 'v_tree': _w((lambda *s: torch.randn(*s, dtype=torch.bfloat16) * 0.05)(B, Hkv, T, D)), 'tree_mask': _w(tree_mask)}

def reference(q, k_cache, v_cache, k_tree, v_tree, tree_mask):
    B, Hq, T, D = q.shape
    Hkv, C = (k_cache.shape[1], k_cache.shape[2])
    rep = Hq // Hkv
    kc = (lambda x, n, axis: torch.repeat_interleave(x, n, dim=axis))(k_cache, rep, axis=1)
    vc = (lambda x, n, axis: torch.repeat_interleave(x, n, dim=axis))(v_cache, rep, axis=1)
    kt = (lambda x, n, axis: torch.repeat_interleave(x, n, dim=axis))(k_tree, rep, axis=1)
    vt = (lambda x, n, axis: torch.repeat_interleave(x, n, dim=axis))(v_tree, rep, axis=1)
    k = torch.concatenate([kc, kt], axis=2)
    v = torch.concatenate([vc, vt], axis=2)
    scale = D ** (-0.5)
    scores = torch.einsum('bhqd,bhkd->bhqk', q, k) * scale
    ctx_mask = torch.ones((B, 1, T, C), dtype=scores.dtype)
    tm = tree_mask[:, None, :, :].clone()
    full_mask = torch.concatenate([ctx_mask, tm], axis=-1)
    scores = scores + (1.0 - full_mask) * -1000000000.0
    p = _softmax(scores, axis=-1)
    return torch.einsum('bhqk,bhkd->bhqd', p, v)
```

```python
import sys, struct
NAME = "standalone__tree_speculative_verify_tree_attention_over_candidate_token_tree__sampling"
NSPLIT = int(sys.argv[1]) if len(sys.argv) > 1 else 4
NCH = NSPLIT * 4
KPC = 8192 // NCH
NSTEP = KPC // 32
assert NSTEP % 2 == 0
def f2u(x): return struct.unpack('<I', struct.pack('<f', x))[0]
import math
SCALE = 128 ** -0.5
C = SCALE * math.log2(math.e)
ACC_BYTES = 128 * NCH * 4096
ML_OFF = ACC_BYTES
o = []
A = o.append
hdr = open('cdna_kernels/%s.s.ref' % NAME).read().split('\n')
for l in hdr:
    if l.startswith('; @launch'): break
    A(l)
A("; @launch kernel=%s_kernel grid=(%d,1,1) block=(256,1,1) lds=0" % (NAME, 128 * NSPLIT))
A("; @launch kernel=combine_kernel grid=(128,1,1) block=(256,1,1) lds=0")
A('.amdgcn_target "amdgcn-amd-amdhsa--gfx950"')
A(".text")
A(".globl %s_kernel" % NAME)
A(".p2align 8")
A(".type %s_kernel,@function" % NAME)
A("%s_kernel:" % NAME)
Q, KA, KB, VA, VB, T, ACC, S, P = 16, 32, 64, 96, 128, 160, 192, 224, 232
vq, vg, vK0, vK1, vV0, vV1, vm, vl, vt, vt2, val, vmc, vx = 1, 2, 3, 4, 5, 6, 7, 8, 9, 10, 11, 12, 13
sC, sPlo, sPhi, sOffK, sOffV = 40, 41, 42, 43, 44
A(f"""
    s_cmp_ge_u32 s2, {128*NSPLIT}
    s_cbranch_scc1 L_end
    s_load_dwordx16 s[4:19], s[0:1], 0
    s_load_dwordx2 s[20:21], s[0:1], 64
    v_lshrrev_b32 v{vt}, 6, v0
    v_and_b32 v0, 63, v0
    v_and_b32 v{vq}, 15, v0
    v_lshrrev_b32 v{vg}, 4, v0
    v_readfirstlane_b32 s3, v{vt}
    s_lshr_b32 s22, s2, {NSPLIT.bit_length()-1}   ; head
    s_and_b32 s23, s2, {NSPLIT-1}            ; split
    s_lshl_b32 s23, s23, 2
    s_add_u32 s23, s23, s3
    s_mov_b32 s{sC}, 0x{f2u(C):08x}
    s_mov_b32 s{sPlo}, 0x05040100
    s_mov_b32 s{sPhi}, 0x07060302
    v_lshlrev_b32 v{vK0}, 8, v{vq}
    v_lshl_add_u32 v{vK0}, v{vg}, 4, v{vK0}
    v_add_u32 v{vK1}, 0x1000, v{vK0}
    v_lshlrev_b32 v{vV0}, 10, v{vg}
    v_lshl_add_u32 v{vV0}, v{vq}, 4, v{vV0}
    v_add_u32 v{vV1}, 0x1000, v{vV0}
    v_mov_b32 v{vm}, 0xf149f2ca
    v_mov_b32 v{vl}, 0
    s_waitcnt lgkmcnt(0)
    s_lshl_b32 s45, s22, 21
    s_lshr_b32 s46, s22, 11
    s_mul_i32 s47, s23, {KPC*256}
    s_add_u32 s45, s45, s47
    s_addc_u32 s46, s46, 0
    s_add_u32 s24, s6, s45
    s_addc_u32 s25, s7, s46
    s_mov_b32 s26, {KPC*256}
    s_mov_b32 s27, 0x00020000
    s_add_u32 s28, s8, s45
    s_addc_u32 s29, s9, s46
    s_mov_b32 s30, {KPC*256}
    s_mov_b32 s31, 0x00020000
    ; Q SRD
    s_lshl_b32 s45, s22, 11
    s_add_u32 s32, s4, s45
    s_addc_u32 s33, s5, 0
    s_mov_b32 s34, 2048
    s_mov_b32 s35, 0x00020000
    s_mov_b32 s{sOffK}, 0
    s_mov_b32 s{sOffV}, 0
""")
for j in range(4):
    A(f"    buffer_load_dwordx4 v[{Q+4*j}:{Q+4*j+3}], v{vK0}, s[32:35], 0 offen offset:{j*64}")
for i in range(32): A(f"    v_mov_b32 v{ACC+i}, 0")
def loadK(buf, srd, soff):
    for t in range(2):
        for j in range(4):
            r = buf + 16*t + 4*j
            A(f"    buffer_load_dwordx4 v[{r}:{r+3}], v{vK0 if t==0 else vK1}, s[{srd}:{srd+3}], {soff} offen offset:{j*64}")
def loadV(buf, srd, soff):
    for e in range(8):
        r = buf + 4*e
        A(f"    buffer_load_dwordx4 v[{r}:{r+3}], v{vV0 if e<4 else vV1}, s[{srd}:{srd+3}], {soff} offen offset:{(e&3)*256}")
def qk(buf, tiles=2):
    for j in range(4):
        for t in range(tiles):
            r = buf + 16*t + 4*j
            c = "0" if j == 0 else f"v[{S+4*t}:{S+4*t+3}]"
            A(f"    v_mfma_f32_16x16x32_bf16 v[{S+4*t}:{S+4*t+3}], v[{r}:{r+3}], v[{Q+4*j}:{Q+4*j+3}], {c}")
def softmax():
    A(f"""    v_max3_f32 v{vt}, v{S}, v{S+1}, v{S+2}
    v_max3_f32 v{vt}, v{vt}, v{S+3}, v{S+4}
    v_max3_f32 v{vt}, v{vt}, v{S+5}, v{S+6}
    v_max3_f32 v{vt}, v{vt}, v{S+7}, v{vm}
    v_mov_b32 v{vt2}, v{vt}
    s_nop 1
    v_permlane16_swap_b32 v{vt}, v{vt2}
    v_max_f32 v{vt}, v{vt}, v{vt2}
    v_mov_b32 v{vt2}, v{vt}
    s_nop 1
    v_permlane32_swap_b32 v{vt}, v{vt2}
    v_max_f32 v{vt}, v{vt}, v{vt2}
    v_sub_f32 v{val}, v{vm}, v{vt}
    v_mul_f32 v{val}, s{sC}, v{val}
    v_exp_f32 v{val}, v{val}
    v_mul_f32 v{vmc}, s{sC}, v{vt}
    v_mov_b32 v{vm}, v{vt}""")
    for i in range(8):
        A(f"    v_fma_f32 v{S+i}, v{S+i}, s{sC}, -v{vmc}")
    for i in range(8):
        A(f"    v_exp_f32 v{S+i}, v{S+i}")
    A(f"    v_mul_f32 v{vl}, v{vl}, v{val}")
    for i in range(32): A(f"    v_mul_f32 v{ACC+i}, v{ACC+i}, v{val}")
    for i in range(8): A(f"    v_add_f32 v{vl}, v{vl}, v{S+i}")
    for i in range(4): A(f"    v_cvt_pk_bf16_f32 v{P+i}, v{S+2*i}, v{S+2*i+1}")
def perms(buf):
    for ip in range(8):
        c, h = ip >> 1, ip & 1
        for p in range(4):
            A(f"    v_perm_b32 v{T+4*ip+p}, v{buf+4*(2*p+1)+c}, v{buf+4*(2*p)+c}, s{sPhi if h else sPlo}")
def pv():
    for ip in range(8):
        A(f"    v_mfma_f32_16x16x32_bf16 v[{ACC+4*ip}:{ACC+4*ip+3}], v[{T+4*ip}:{T+4*ip+3}], v[{P}:{P+3}], v[{ACC+4*ip}:{ACC+4*ip+3}]")
def step(kb, vb):
    A("    s_waitcnt vmcnt(24)")
    qk(kb)
    loadK(kb, 24, f"s{sOffK}")
    A(f"    s_add_u32 s{sOffK}, s{sOffK}, 8192")
    softmax()
    A("    s_waitcnt vmcnt(24)")
    perms(vb)
    loadV(vb, 28, f"s{sOffV}")
    A(f"    s_add_u32 s{sOffV}, s{sOffV}, 8192")
    pv()
loadK(KA, 24, "0"); loadV(VA, 28, "0")
A("    s_mov_b32 s45, 8192")
loadK(KB, 24, "s45"); loadV(VB, 28, "s45")
A(f"    s_mov_b32 s{sOffK}, 16384\n    s_mov_b32 s{sOffV}, 16384\n    s_mov_b32 s48, 0")
A("L_loop:")
step(KA, VA); step(KB, VB)
A(f"""    s_add_u32 s48, s48, 1
    s_cmp_lt_u32 s48, {NSTEP//2}
    s_cbranch_scc1 L_loop
    s_waitcnt vmcnt(0)
    s_cmp_lg_u32 s23, {NCH-1}
    s_cbranch_scc1 L_epi
    s_lshl_b32 s45, s22, 10
    s_add_u32 s24, s10, s45
    s_addc_u32 s25, s11, 0
    s_mov_b32 s26, 1024
    s_add_u32 s28, s12, s45
    s_addc_u32 s29, s13, 0
    s_mov_b32 s30, 1024
    s_lshr_b32 s45, s22, 4
    s_lshl_b32 s45, s45, 5
    s_add_u32 s32, s14, s45
    s_addc_u32 s33, s15, 0
    s_mov_b32 s34, 32
    v_and_b32 v{vx}, 3, v{vq}
    v_lshlrev_b32 v{vx}, 3, v{vx}
    buffer_load_dwordx2 v[14:15], v{vx}, s[32:35], 0 offen""")
loadK(KA, 24, "0"); loadV(VA, 28, "0")
A("    s_waitcnt vmcnt(0)")
qk(KA, 1)
A(f"""    s_mov_b32 s45, 0x{f2u(-1e9/SCALE):08x}
    v_lshlrev_b32 v{T}, 16, v14
    v_and_b32 v{T+1}, 0xffff0000, v14
    v_lshlrev_b32 v{T+2}, 16, v15
    v_and_b32 v{T+3}, 0xffff0000, v15
    v_cmp_eq_u32 vcc, 0, v{vg}
    v_mov_b32 v{vx}, 0xff800000""")
for i in range(4):
    A(f"    v_sub_f32 v{T+i}, 1.0, v{T+i}")
A("    s_nop 4")
for i in range(4):
    A(f"    v_fma_f32 v{S+i}, v{T+i}, s45, v{S+i}")
    A(f"    v_cndmask_b32 v{S+i}, v{vx}, v{S+i}, vcc")
    A(f"    v_mov_b32 v{S+4+i}, v{vx}")
softmax()
perms(VA)
A("    s_nop 1")
pv()
A(f"""L_epi:
    v_mov_b32 v{vt2}, v{vl}
    s_nop 1
    v_permlane16_swap_b32 v{vl}, v{vt2}
    v_add_f32 v{vl}, v{vl}, v{vt2}
    v_mov_b32 v{vt2}, v{vl}
    s_nop 1
    v_permlane32_swap_b32 v{vl}, v{vt2}
    v_add_f32 v{vl}, v{vl}, v{vt2}
    s_mov_b32 s36, s20
    s_mov_b32 s37, s21
    s_mov_b32 s38, {ACC_BYTES + 128*NCH*64}
    s_mov_b32 s39, 0x00020000
    s_mul_i32 s45, s22, {NCH}
    s_add_u32 s45, s45, s23
    s_lshl_b32 s46, s45, 12
    s_lshl_b32 s47, s45, 6
    s_add_u32 s47, s47, {ML_OFF}
    s_nop 4""")
for r in range(4):
    for ip in range(8):
        A(f"    v_mov_b32 v{T+8*r+ip}, v{ACC+4*ip+r}")
A(f"""    v_lshlrev_b32 v{vt}, 9, v{vq}
    v_lshl_add_u32 v{vt}, v{vg}, 7, v{vt}
    v_lshlrev_b32 v{vt2}, 3, v{vq}
    v_mov_b32 v{vx}, v{vl}
    v_mov_b32 v{vmc}, v{vm}
    v_cmp_gt_u32 vcc, 8, v{vq}
    s_and_saveexec_b64 s[48:49], vcc""")
for j in range(8):
    A(f"    buffer_store_dwordx4 v[{T+4*j}:{T+4*j+3}], v{vt}, s[36:39], s46 offen offset:{16*j}")
A(f"""    v_cmp_eq_u32 vcc, 0, v{vg}
    s_and_b64 exec, exec, vcc
    buffer_store_dwordx2 v[{vmc}:{vx}], v{vt2}, s[36:39], s47 offen
L_end:
    s_endpgm
""")
A(""".globl combine_kernel
.p2align 8
.type combine_kernel,@function
combine_kernel:
    s_cmp_ge_u32 s2, 128
    s_cbranch_scc1 L_cend
    s_load_dwordx2 s[16:17], s[0:1], 48
    s_load_dwordx2 s[20:21], s[0:1], 64
    v_lshrrev_b32 v1, 5, v0        ; q
    v_and_b32 v2, 31, v0           ; d/4
    v_lshlrev_b32 v3, 9, v1
    v_lshl_add_u32 v3, v2, 4, v3
    v_lshlrev_b32 v4, 3, v1
    s_waitcnt lgkmcnt(0)""")
A(f"""    s_mov_b32 s36, s20
    s_mov_b32 s37, s21
    s_mov_b32 s38, {ACC_BYTES + 128*NCH*64}
    s_mov_b32 s39, 0x00020000
    s_mov_b32 s32, s16
    s_mov_b32 s33, s17
    s_mov_b32 s34, {8*32*4*128*2}
    s_mov_b32 s35, 0x00020000
    s_mov_b32 s40, 0x{f2u(C):08x}
    s_mul_i32 s45, s2, {NCH}
    s_lshl_b32 s46, s45, 12
    s_lshl_b32 s47, s45, 6
    s_add_u32 s47, s47, {ML_OFF}""")
ML, AC = 16, 16 + 2*NCH
for s in range(NCH):
    A(f"    buffer_load_dwordx2 v[{ML+2*s}:{ML+2*s+1}], v4, s[36:39], s47 offen offset:{64*s}")
for s in range(NCH):
    if s: A("    s_add_u32 s46, s46, 4096")
    A(f"    buffer_load_dwordx4 v[{AC+4*s}:{AC+4*s+3}], v3, s[36:39], s46 offen")
A(f"    s_waitcnt vmcnt({NCH})")
A(f"    v_mov_b32 v5, v{ML}")
for s in range(1, NCH): A(f"    v_max_f32 v5, v5, v{ML+2*s}")
A("    v_mov_b32 v6, 0")
for i in range(4): A(f"    v_mov_b32 v{8+i}, 0")
for s in range(NCH):
    A(f"    v_sub_f32 v7, v{ML+2*s}, v5")
    A(f"    v_mul_f32 v7, s40, v7")
    A(f"    v_exp_f32 v7, v7")
    A(f"    s_waitcnt vmcnt({NCH-1-s})")
    A(f"    v_fmac_f32 v6, v7, v{ML+2*s+1}")
    for i in range(4): A(f"    v_fmac_f32 v{8+i}, v7, v{AC+4*s+i}")
A(f"""    v_rcp_f32 v6, v6
    s_nop 0
    v_mul_f32 v8, v8, v6
    v_mul_f32 v9, v9, v6
    v_mul_f32 v10, v10, v6
    v_mul_f32 v11, v11, v6
    v_cvt_pk_bf16_f32 v12, v8, v9
    v_cvt_pk_bf16_f32 v13, v10, v11
    s_lshl_b32 s45, s2, 11
    v_lshlrev_b32 v14, 3, v0
    buffer_store_dwordx2 v[12:13], v14, s[32:35], s45 offen
L_cend:
    s_endpgm
.section .rodata,"a"
.p2align 6
.amdhsa_kernel {NAME}_kernel
  .amdhsa_next_free_vgpr 240
  .amdhsa_next_free_sgpr 56
  .amdhsa_accum_offset 240
  .amdhsa_group_segment_fixed_size 0
  .amdhsa_kernarg_size 72
  .amdhsa_user_sgpr_count 2
  .amdhsa_user_sgpr_kernarg_segment_ptr 1
  .amdhsa_system_sgpr_workgroup_id_x 1
.end_amdhsa_kernel
.p2align 6
.amdhsa_kernel combine_kernel
  .amdhsa_next_free_vgpr {AC+4*NCH}
  .amdhsa_next_free_sgpr 56
  .amdhsa_accum_offset {(AC+4*NCH+3)//4*4}
  .amdhsa_group_segment_fixed_size 0
  .amdhsa_kernarg_size 72
  .amdhsa_user_sgpr_count 2
  .amdhsa_user_sgpr_kernarg_segment_ptr 1
  .amdhsa_system_sgpr_workgroup_id_x 1
.end_amdhsa_kernel""")
out = sys.argv[2] if len(sys.argv) > 2 else 'cdna_kernels/%s.s' % NAME
open(out, 'w').write('\n'.join(o) + '\n')
```

```python
import sys, struct
NAME = "standalone__tree_speculative_verify_tree_attention_over_candidate_token_tree__sampling"
NSPLIT = int(sys.argv[1]) if len(sys.argv) > 1 else 4
IL = int(sys.argv[3]) if len(sys.argv) > 3 else 0
NCH = NSPLIT * 4
KPC = 8192 // NCH
NSTEP = KPC // 32
STR = 32768 if IL else 8192
assert NSTEP % 2 == 0
def f2u(x): return struct.unpack('<I', struct.pack('<f', x))[0]
import math
SCALE = 128 ** -0.5
C = SCALE * math.log2(math.e)
ACC_BYTES = 128 * NCH * 4096
ML_OFF = ACC_BYTES
o = []
A = o.append
hdr = open('cdna_kernels/%s.s.ref' % NAME).read().split('\n')
for l in hdr:
    if l.startswith('; @launch'): break
    A(l)
A("; @launch kernel=%s_kernel grid=(%d,1,1) block=(256,1,1) lds=0" % (NAME, 128 * NSPLIT))
A("; @launch kernel=combine_kernel grid=(128,1,1) block=(256,1,1) lds=0")
A('.amdgcn_target "amdgcn-amd-amdhsa--gfx950"')
A(".text")
A(".globl %s_kernel" % NAME)
A(".p2align 8")
A(".type %s_kernel,@function" % NAME)
A("%s_kernel:" % NAME)
Q, KA, KB, VA, VB, T, ACC, S, P = 16, 32, 64, 96, 128, 160, 192, 224, 232
vq, vg, vK0, vK1, vV0, vV1, vm, vl, vt, vt2, val, vmc, vx = 1, 2, 3, 4, 5, 6, 7, 8, 9, 10, 11, 12, 13
sC, sPlo, sPhi, sOffK, sOffV = 40, 41, 42, 43, 44
A(f"""
    s_cmp_ge_u32 s2, {128*NSPLIT}
    s_cbranch_scc1 L_end
    s_load_dwordx16 s[4:19], s[0:1], 0
    s_load_dwordx2 s[20:21], s[0:1], 64
    v_lshrrev_b32 v{vt}, 6, v0
    v_and_b32 v0, 63, v0
    v_and_b32 v{vq}, 15, v0
    v_lshrrev_b32 v{vg}, 4, v0
    v_readfirstlane_b32 s3, v{vt}
    s_lshr_b32 s22, s2, {NSPLIT.bit_length()-1}   ; head
    s_and_b32 s23, s2, {NSPLIT-1}            ; split
    s_lshl_b32 s23, s23, 2
    s_add_u32 s23, s23, s3
    s_mov_b32 s{sC}, 0x{f2u(C):08x}
    s_mov_b32 s{sPlo}, 0x05040100
    s_mov_b32 s{sPhi}, 0x07060302
    v_lshlrev_b32 v{vK0}, 8, v{vq}
    v_lshl_add_u32 v{vK0}, v{vg}, 4, v{vK0}
    v_add_u32 v{vK1}, 0x1000, v{vK0}
    v_lshlrev_b32 v{vV0}, 10, v{vg}
    v_lshl_add_u32 v{vV0}, v{vq}, 4, v{vV0}
    v_add_u32 v{vV1}, 0x1000, v{vV0}
    v_mov_b32 v{vm}, 0xf149f2ca
    v_mov_b32 v{vl}, 0
    s_waitcnt lgkmcnt(0)
    s_lshl_b32 s45, s22, 21
    s_lshr_b32 s46, s22, 11
    s_mul_i32 s47, s23, {KPC*256}
    s_and_b32 s50, s23, {~3 & 0xffffffff}
    s_mul_i32 s50, s50, {KPC*256}
    s_lshl_b32 s51, s3, 13
    s_add_u32 s50, s50, s51
    s_sub_u32 s51, {KPC*1024}, s51
    s_cmp_eq_u32 {IL}, 1
    s_cselect_b32 s47, s50, s47
    s_cselect_b32 s51, s51, {KPC*256}
    s_add_u32 s45, s45, s47
    s_addc_u32 s46, s46, 0
    s_add_u32 s24, s6, s45
    s_addc_u32 s25, s7, s46
    s_mov_b32 s26, s51
    s_mov_b32 s27, 0x00020000
    s_add_u32 s28, s8, s45
    s_addc_u32 s29, s9, s46
    s_mov_b32 s30, s51
    s_mov_b32 s31, 0x00020000
    ; Q SRD
    s_lshl_b32 s45, s22, 11
    s_add_u32 s32, s4, s45
    s_addc_u32 s33, s5, 0
    s_mov_b32 s34, 2048
    s_mov_b32 s35, 0x00020000
    s_mov_b32 s{sOffK}, 0
    s_mov_b32 s{sOffV}, 0
""")
for j in range(4):
    A(f"    buffer_load_dwordx4 v[{Q+4*j}:{Q+4*j+3}], v{vK0}, s[32:35], 0 offen offset:{j*64}")
for i in range(32): A(f"    v_mov_b32 v{ACC+i}, 0")
def loadK(buf, srd, soff):
    for t in range(2):
        for j in range(4):
            r = buf + 16*t + 4*j
            A(f"    buffer_load_dwordx4 v[{r}:{r+3}], v{vK0 if t==0 else vK1}, s[{srd}:{srd+3}], {soff} offen offset:{j*64} nt")
def loadV(buf, srd, soff):
    for e in range(8):
        r = buf + 4*e
        A(f"    buffer_load_dwordx4 v[{r}:{r+3}], v{vV0 if e<4 else vV1}, s[{srd}:{srd+3}], {soff} offen offset:{(e&3)*256} nt")
def qk(buf, tiles=2):
    for j in range(4):
        for t in range(tiles):
            r = buf + 16*t + 4*j
            c = "0" if j == 0 else f"v[{S+4*t}:{S+4*t+3}]"
            A(f"    v_mfma_f32_16x16x32_bf16 v[{S+4*t}:{S+4*t+3}], v[{r}:{r+3}], v[{Q+4*j}:{Q+4*j+3}], {c}")
def softmax():
    A(f"""    v_max3_f32 v{vt}, v{S}, v{S+1}, v{S+2}
    v_max3_f32 v{vt}, v{vt}, v{S+3}, v{S+4}
    v_max3_f32 v{vt}, v{vt}, v{S+5}, v{S+6}
    v_max3_f32 v{vt}, v{vt}, v{S+7}, v{vm}
    v_mov_b32 v{vt2}, v{vt}
    s_nop 1
    v_permlane16_swap_b32 v{vt}, v{vt2}
    v_max_f32 v{vt}, v{vt}, v{vt2}
    v_mov_b32 v{vt2}, v{vt}
    s_nop 1
    v_permlane32_swap_b32 v{vt}, v{vt2}
    v_max_f32 v{vt}, v{vt}, v{vt2}
    v_sub_f32 v{val}, v{vm}, v{vt}
    v_mul_f32 v{val}, s{sC}, v{val}
    v_exp_f32 v{val}, v{val}
    v_mul_f32 v{vmc}, s{sC}, v{vt}
    v_mov_b32 v{vm}, v{vt}""")
    for i in range(8):
        A(f"    v_fma_f32 v{S+i}, v{S+i}, s{sC}, -v{vmc}")
    for i in range(8):
        A(f"    v_exp_f32 v{S+i}, v{S+i}")
    A(f"    v_mul_f32 v{vl}, v{vl}, v{val}")
    for i in range(32): A(f"    v_mul_f32 v{ACC+i}, v{ACC+i}, v{val}")
    for i in range(8): A(f"    v_add_f32 v{vl}, v{vl}, v{S+i}")
    for i in range(4): A(f"    v_cvt_pk_bf16_f32 v{P+i}, v{S+2*i}, v{S+2*i+1}")
def perms(buf):
    for ip in range(8):
        c, h = ip >> 1, ip & 1
        for p in range(4):
            A(f"    v_perm_b32 v{T+4*ip+p}, v{buf+4*(2*p+1)+c}, v{buf+4*(2*p)+c}, s{sPhi if h else sPlo}")
def pv():
    for ip in range(8):
        A(f"    v_mfma_f32_16x16x32_bf16 v[{ACC+4*ip}:{ACC+4*ip+3}], v[{T+4*ip}:{T+4*ip+3}], v[{P}:{P+3}], v[{ACC+4*ip}:{ACC+4*ip+3}]")
def step(kb, vb):
    A("    s_waitcnt vmcnt(24)")
    qk(kb)
    loadK(kb, 24, f"s{sOffK}")
    A(f"    s_add_u32 s{sOffK}, s{sOffK}, {STR}")
    softmax()
    A("    s_waitcnt vmcnt(24)")
    perms(vb)
    loadV(vb, 28, f"s{sOffV}")
    A(f"    s_add_u32 s{sOffV}, s{sOffV}, {STR}")
    pv()
loadK(KA, 24, "0"); loadV(VA, 28, "0")
A(f"    s_mov_b32 s45, {STR}")
loadK(KB, 24, "s45"); loadV(VB, 28, "s45")
A(f"    s_mov_b32 s{sOffK}, {2*STR}\n    s_mov_b32 s{sOffV}, {2*STR}\n    s_mov_b32 s48, 0")
A("L_loop:")
step(KA, VA); step(KB, VB)
A(f"""    s_add_u32 s48, s48, 1
    s_cmp_lt_u32 s48, {NSTEP//2}
    s_cbranch_scc1 L_loop
    s_waitcnt vmcnt(0)
    s_cmp_lg_u32 s23, {NCH-1}
    s_cbranch_scc1 L_epi
    s_lshl_b32 s45, s22, 10
    s_add_u32 s24, s10, s45
    s_addc_u32 s25, s11, 0
    s_mov_b32 s26, 1024
    s_add_u32 s28, s12, s45
    s_addc_u32 s29, s13, 0
    s_mov_b32 s30, 1024
    s_lshr_b32 s45, s22, 4
    s_lshl_b32 s45, s45, 5
    s_add_u32 s32, s14, s45
    s_addc_u32 s33, s15, 0
    s_mov_b32 s34, 32
    v_and_b32 v{vx}, 3, v{vq}
    v_lshlrev_b32 v{vx}, 3, v{vx}
    buffer_load_dwordx2 v[14:15], v{vx}, s[32:35], 0 offen""")
loadK(KA, 24, "0"); loadV(VA, 28, "0")
A("    s_waitcnt vmcnt(0)")
qk(KA, 1)
A(f"""    s_mov_b32 s45, 0x{f2u(-1e9/SCALE):08x}
    v_lshlrev_b32 v{T}, 16, v14
    v_and_b32 v{T+1}, 0xffff0000, v14
    v_lshlrev_b32 v{T+2}, 16, v15
    v_and_b32 v{T+3}, 0xffff0000, v15
    v_cmp_eq_u32 vcc, 0, v{vg}
    v_mov_b32 v{vx}, 0xff800000""")
for i in range(4):
    A(f"    v_sub_f32 v{T+i}, 1.0, v{T+i}")
A("    s_nop 4")
for i in range(4):
    A(f"    v_fma_f32 v{S+i}, v{T+i}, s45, v{S+i}")
    A(f"    v_cndmask_b32 v{S+i}, v{vx}, v{S+i}, vcc")
    A(f"    v_mov_b32 v{S+4+i}, v{vx}")
softmax()
perms(VA)
A("    s_nop 1")
pv()
A(f"""L_epi:
    v_mov_b32 v{vt2}, v{vl}
    s_nop 1
    v_permlane16_swap_b32 v{vl}, v{vt2}
    v_add_f32 v{vl}, v{vl}, v{vt2}
    v_mov_b32 v{vt2}, v{vl}
    s_nop 1
    v_permlane32_swap_b32 v{vl}, v{vt2}
    v_add_f32 v{vl}, v{vl}, v{vt2}
    s_mov_b32 s36, s20
    s_mov_b32 s37, s21
    s_mov_b32 s38, {ACC_BYTES + 128*NCH*64}
    s_mov_b32 s39, 0x00020000
    s_mul_i32 s45, s22, {NCH}
    s_add_u32 s45, s45, s23
    s_lshl_b32 s46, s45, 12
    s_lshl_b32 s47, s45, 6
    s_add_u32 s47, s47, {ML_OFF}
    s_nop 4""")
for r in range(4):
    for ip in range(8):
        A(f"    v_mov_b32 v{T+8*r+ip}, v{ACC+4*ip+r}")
A(f"""    v_lshlrev_b32 v{vt}, 9, v{vq}
    v_lshl_add_u32 v{vt}, v{vg}, 7, v{vt}
    v_lshlrev_b32 v{vt2}, 3, v{vq}
    v_mov_b32 v{vx}, v{vl}
    v_mov_b32 v{vmc}, v{vm}
    v_cmp_gt_u32 vcc, 8, v{vq}
    s_and_saveexec_b64 s[48:49], vcc""")
for j in range(8):
    A(f"    buffer_store_dwordx4 v[{T+4*j}:{T+4*j+3}], v{vt}, s[36:39], s46 offen offset:{16*j}")
A(f"""    v_cmp_eq_u32 vcc, 0, v{vg}
    s_and_b64 exec, exec, vcc
    buffer_store_dwordx2 v[{vmc}:{vx}], v{vt2}, s[36:39], s47 offen
L_end:
    s_endpgm
""")
A(""".globl combine_kernel
.p2align 8
.type combine_kernel,@function
combine_kernel:
    s_cmp_ge_u32 s2, 128
    s_cbranch_scc1 L_cend
    s_load_dwordx2 s[16:17], s[0:1], 48
    s_load_dwordx2 s[20:21], s[0:1], 64
    v_lshrrev_b32 v1, 5, v0        ; q
    v_and_b32 v2, 31, v0           ; d/4
    v_lshlrev_b32 v3, 9, v1
    v_lshl_add_u32 v3, v2, 4, v3
    v_lshlrev_b32 v4, 3, v1
    s_waitcnt lgkmcnt(0)""")
A(f"""    s_mov_b32 s36, s20
    s_mov_b32 s37, s21
    s_mov_b32 s38, {ACC_BYTES + 128*NCH*64}
    s_mov_b32 s39, 0x00020000
    s_mov_b32 s32, s16
    s_mov_b32 s33, s17
    s_mov_b32 s34, {8*32*4*128*2}
    s_mov_b32 s35, 0x00020000
    s_mov_b32 s40, 0x{f2u(C):08x}
    s_mul_i32 s45, s2, {NCH}
    s_lshl_b32 s46, s45, 12
    s_lshl_b32 s47, s45, 6
    s_add_u32 s47, s47, {ML_OFF}""")
ML, AC = 16, 16 + 2*NCH
for s in range(NCH):
    A(f"    buffer_load_dwordx2 v[{ML+2*s}:{ML+2*s+1}], v4, s[36:39], s47 offen offset:{64*s}")
for s in range(NCH):
    if s: A("    s_add_u32 s46, s46, 4096")
    A(f"    buffer_load_dwordx4 v[{AC+4*s}:{AC+4*s+3}], v3, s[36:39], s46 offen")
A(f"    s_waitcnt vmcnt({NCH})")
A(f"    v_mov_b32 v5, v{ML}")
for s in range(1, NCH): A(f"    v_max_f32 v5, v5, v{ML+2*s}")
A("    v_mov_b32 v6, 0")
for i in range(4): A(f"    v_mov_b32 v{8+i}, 0")
for s in range(NCH):
    A(f"    v_sub_f32 v7, v{ML+2*s}, v5")
    A(f"    v_mul_f32 v7, s40, v7")
    A(f"    v_exp_f32 v7, v7")
    A(f"    s_waitcnt vmcnt({NCH-1-s})")
    A(f"    v_fmac_f32 v6, v7, v{ML+2*s+1}")
    for i in range(4): A(f"    v_fmac_f32 v{8+i}, v7, v{AC+4*s+i}")
A(f"""    v_rcp_f32 v6, v6
    s_nop 0
    v_mul_f32 v8, v8, v6
    v_mul_f32 v9, v9, v6
    v_mul_f32 v10, v10, v6
    v_mul_f32 v11, v11, v6
    v_cvt_pk_bf16_f32 v12, v8, v9
    v_cvt_pk_bf16_f32 v13, v10, v11
    s_lshl_b32 s45, s2, 11
    v_lshlrev_b32 v14, 3, v0
    buffer_store_dwordx2 v[12:13], v14, s[32:35], s45 offen
L_cend:
    s_endpgm
.section .rodata,"a"
.p2align 6
.amdhsa_kernel {NAME}_kernel
  .amdhsa_next_free_vgpr 240
  .amdhsa_next_free_sgpr 56
  .amdhsa_accum_offset 240
  .amdhsa_group_segment_fixed_size 0
  .amdhsa_kernarg_size 72
  .amdhsa_user_sgpr_count 2
  .amdhsa_user_sgpr_kernarg_segment_ptr 1
  .amdhsa_system_sgpr_workgroup_id_x 1
.end_amdhsa_kernel
.p2align 6
.amdhsa_kernel combine_kernel
  .amdhsa_next_free_vgpr {AC+4*NCH}
  .amdhsa_next_free_sgpr 56
  .amdhsa_accum_offset {(AC+4*NCH+3)//4*4}
  .amdhsa_group_segment_fixed_size 0
  .amdhsa_kernarg_size 72
  .amdhsa_user_sgpr_count 2
  .amdhsa_user_sgpr_kernarg_segment_ptr 1
  .amdhsa_system_sgpr_workgroup_id_x 1
.end_amdhsa_kernel""")
out = sys.argv[2] if len(sys.argv) > 2 else 'cdna_kernels/%s.s' % NAME
open(out, 'w').write('\n'.join(o) + '\n')
```
